```python
import torch

def _softmax(x, axis=-1):
    return torch.softmax(x, dim=axis)

def _gelu(x):
    return torch.nn.functional.gelu(x, approximate='tanh')

def _silu(x):
    return torch.nn.functional.silu(x)

def _sigmoid(x):
    return torch.sigmoid(x)

def _layernorm(x, axis=-1, eps=1e-05):
    m = x.mean(dim=axis, keepdim=True)
    v = x.var(dim=axis, keepdim=True, unbiased=False)
    return (x - m) / torch.sqrt(v + eps)

def _scatter_add(tgt, idx, src, axis=0):
    return tgt.clone().index_add_(axis, idx, src)

def _segment_sum(src, seg, n):
    out = torch.zeros((n,) + src.shape[1:], dtype=src.dtype)
    return out.index_add_(0, seg, src)

def _pad(x, pw):
    flat = tuple((v for pair in reversed(pw) for v in pair))
    return torch.nn.functional.pad(x, flat)
kernel_name = 'adaLN_cond__sliding_block_cached__glu_gated_swiglu__decode'

def setup_inputs():

    _w = lambda a: (lambda t: t.to(torch.bfloat16) if t.is_floating_point() else t)(torch.as_tensor(a))

    def _A_setup():
        B, Sq, D = (8, 1, 448)
        Hq, Hkv, Sk, Dh = (16, 8, 4096, 256)
        assert Hq % Hkv == 0, (Hq, Hkv)
        return {'x': _w((lambda *s: torch.randn(*s, dtype=torch.bfloat16) * 0.1)(B, Sq, D)), 'k_cache': _w((lambda *s: torch.randn(*s, dtype=torch.bfloat16) * 0.8)(B, Hkv, Sk, Dh)), 'v_cache': _w((lambda *s: torch.randn(*s, dtype=torch.bfloat16) * 3.2)(B, Hkv, Sk, Dh)), 'wq': _w((lambda *s: torch.randn(*s, dtype=torch.bfloat16) * 0.8)(D, Hq * Dh) * D ** (-0.5)), 'wo': _w((lambda *s: torch.randn(*s, dtype=torch.bfloat16) * 3.2)(Hq * Dh, D) * (Hq * Dh) ** (-0.5))}
    _A_in = _A_setup()

    def _B_setup():
        B, S, D, F = (8, 1, 448, 1792)
        return {'x': _w((lambda *s: torch.randn(*s, dtype=torch.bfloat16) * 0.1)(B, S, D)), 'w1': _w((lambda *s: torch.randn(*s, dtype=torch.bfloat16) * 3.2)(D, F) * (2.0 / D) ** 0.5), 'w3': _w((lambda *s: torch.randn(*s, dtype=torch.bfloat16) * 3.2)(D, F) * (2.0 / D) ** 0.5), 'w2': _w((lambda *s: torch.randn(*s, dtype=torch.bfloat16) * 3.2)(F, D) * (2.0 / F) ** 0.5)}
    _B_in = _B_setup()
    return {'A_x': _A_in['x'], 'A_k_cache': _A_in['k_cache'], 'A_v_cache': _A_in['v_cache'], 'A_wq': _A_in['wq'], 'A_wo': _A_in['wo'], 'B_x': _B_in['x'], 'B_w1': _B_in['w1'], 'B_w3': _B_in['w3'], 'B_w2': _B_in['w2'], 'c': _w((lambda *s: torch.randn(*s, dtype=torch.bfloat16) * 0.8)(8, 448) * 8.0), 'w_mod': _w((lambda *s: torch.randn(*s, dtype=torch.bfloat16) * 0.8)(448, 6 * 448) * 448 ** (-0.5) * 8.0)}

def reference(A_x, A_k_cache, A_v_cache, A_wq, A_wo, B_x, B_w1, B_w3, B_w2, c, w_mod):

    def _A_ref(x, k_cache, v_cache, wq, wo):
        B, Sq, D = x.shape
        Hq, Dh = (16, 256)
        Hkv, Sk = (k_cache.shape[1], k_cache.shape[2])
        W = min(4096, max(256, Sk // 4))
        rep = Hq // Hkv
        q = (lambda x, *d: x.permute(*d))((x @ wq).reshape(B, Sq, Hq, Dh), 0, 2, 1, 3)
        k = (lambda x, n, axis: torch.repeat_interleave(x, n, dim=axis))(k_cache[:, :, Sk - W:, :], rep, axis=1)
        v = (lambda x, n, axis: torch.repeat_interleave(x, n, dim=axis))(v_cache[:, :, Sk - W:, :], rep, axis=1)
        scores = torch.einsum('bhqd,bhkd->bhqk', q, k) * Dh ** (-0.5)
        p = _softmax(scores, axis=-1)
        o = torch.einsum('bhqk,bhkd->bhqd', p, v)
        return (lambda x, *d: x.permute(*d))(o, 0, 2, 1, 3).reshape(B, Sq, Hq * Dh) @ wo

    def _B_ref(x, w1, w3, w2):
        gate = torch.einsum('bsd,df->bsf', x, w1)
        up = torch.einsum('bsd,df->bsf', x, w3)
        h = _silu(gate) * up
        out = torch.einsum('bsf,fd->bsd', h, w2)
        return out
    x = A_x
    mod = (_silu(c) @ w_mod).reshape(c.shape[0], 6, 1, -1)
    sa, ca, ga, sb, cb, gb = (mod[:, 0].clone(), mod[:, 1].clone(), mod[:, 2].clone(), mod[:, 3].clone(), mod[:, 4].clone(), mod[:, 5].clone())
    h = _layernorm(x, axis=-1) * (1 + ca) + sa
    x = x + ga * _A_ref(h, A_k_cache, A_v_cache, A_wq, A_wo)
    h = _layernorm(x, axis=-1) * (1 + cb) + sb
    x = x + gb * _B_ref(h, B_w1, B_w3, B_w2)
    return x
```

```python
import sys
NAME = "adaLN_cond__sliding_block_cached__glu_gated_swiglu__decode"
HDR = open("cdna_kernels/%s.s.ref" % NAME).read().split("; Override launch geometry")[0]

L = []
def e(s): L.append("    " + s)
def lab(s): L.append(s + ":")

KA = dict(x=0, k=8, v=16, wq=24, wo=32, bx=40, w1=48, w3=56, w2=64, c=72, wmod=80, out=88, dbg=96, ws=104)
SZ = dict(x=8*448*2, k=8*8*4096*256*2, v=8*8*4096*256*2, wq=448*4096*2, wo=4096*448*2, w1=448*1792*2, w3=448*1792*2,
          w2=1792*448*2, c=8*448*2, wmod=448*2688*2, out=8*448*2, dbg=256, ws=536870912)
WS_MOD = 0
WS_Q = 0x20000
WS_S = 0x40000
WS_O = 0xC0000
WS_X1 = 0xE0000
WS_H3 = 0xF0000

def srd(name, s):
    e(f"s_load_dwordx2 s[{s}:{s+1}], s[0:1], {KA[name]}")
    e(f"s_mov_b32 s{s+2}, {SZ[name]}")
    e(f"s_mov_b32 s{s+3}, 0x00020000")

def rbf(v, t=None):
    e(f"v_cvt_pk_bf16_f32 v{v}, v{v}, v{v}")
    e(f"v_and_b32 v{v}, 0xffff0000, v{v}")

def wave_sum(v, t):
    e("s_nop 1")
    e(f"v_add_f32_dpp v{v}, v{v}, v{v} quad_perm:[1,0,3,2] row_mask:0xf bank_mask:0xf")
    e("s_nop 1")
    e(f"v_add_f32_dpp v{v}, v{v}, v{v} quad_perm:[2,3,0,1] row_mask:0xf bank_mask:0xf")
    e("s_nop 1")
    e(f"v_add_f32_dpp v{v}, v{v}, v{v} row_half_mirror row_mask:0xf bank_mask:0xf")
    e("s_nop 1")
    e(f"v_add_f32_dpp v{v}, v{v}, v{v} row_mirror row_mask:0xf bank_mask:0xf")
    e("s_nop 1")
    e(f"v_readlane_b32 s30, v{v}, 0")
    e(f"v_readlane_b32 s31, v{v}, 16")
    e(f"v_readlane_b32 s32, v{v}, 32")
    e(f"v_readlane_b32 s33, v{v}, 48")
    e("s_nop 3")
    e(f"v_mov_b32 v{v}, s30")
    e(f"v_add_f32 v{v}, s31, v{v}")
    e(f"v_add_f32 v{v}, s32, v{v}")
    e(f"v_add_f32 v{v}, s33, v{v}")

def wave_max(v):
    e("s_nop 1")
    e(f"v_max_f32_dpp v{v}, v{v}, v{v} quad_perm:[1,0,3,2] row_mask:0xf bank_mask:0xf")
    e("s_nop 1")
    e(f"v_max_f32_dpp v{v}, v{v}, v{v} quad_perm:[2,3,0,1] row_mask:0xf bank_mask:0xf")
    e("s_nop 1")
    e(f"v_max_f32_dpp v{v}, v{v}, v{v} row_half_mirror row_mask:0xf bank_mask:0xf")
    e("s_nop 1")
    e(f"v_max_f32_dpp v{v}, v{v}, v{v} row_mirror row_mask:0xf bank_mask:0xf")
    e("s_nop 1")
    e(f"v_readlane_b32 s30, v{v}, 0")
    e(f"v_readlane_b32 s31, v{v}, 16")
    e(f"v_readlane_b32 s32, v{v}, 32")
    e(f"v_readlane_b32 s33, v{v}, 48")
    e("s_nop 3")
    e(f"v_mov_b32 v{v}, s30")
    e(f"v_max_f32 v{v}, s31, v{v}")
    e(f"v_max_f32 v{v}, s32, v{v}")
    e(f"v_max_f32 v{v}, s33, v{v}")

def silu_rbf(v, t):
    e(f"v_mul_f32 v{t}, 0xbfb8aa3b, v{v}")
    e(f"v_exp_f32 v{t}, v{t}")
    e("s_nop 0")
    e(f"v_add_f32 v{t}, 1.0, v{t}")
    e(f"v_rcp_f32 v{t}, v{t}")
    e("s_nop 0")
    e(f"v_mul_f32 v{v}, v{v}, v{t}")
    rbf(v)

kernels = []
def kstart(name, nwg):
    L.append(".p2align 8")
    L.append(f".globl {name}")
    L.append(f".type {name},@function")
    lab(name)
    e(f"s_cmp_ge_u32 s2, {nwg}")
    e(f"s_cbranch_scc1 {name}_end")
def kend(name, grid, block, lds, vg=128):
    lab(name + "_end")
    e("s_endpgm")
    kernels.append((name, grid, block, lds, vg))

def gemv_body(K, wsrds, row_bytes, ACC, uid):
    nm = len(wsrds)
    niter = K // 64
    assert K % 64 == 0
    e("v_and_b32 v1, 15, v0")
    e("v_lshrrev_b32 v2, 4, v0")
    e(f"s_mov_b32 s34, {row_bytes}")
    e("v_mul_lo_u32 v3, v2, s34")
    e("s_lshl_b32 s35, s2, 6")
    e("v_lshl_add_u32 v3, v1, 2, v3")
    e("v_add_u32 v3, s35, v3")
    e("v_lshlrev_b32 v4, 5, v2")
    for m in range(nm):
        for i in range(16):
            e(f"v_mov_b32 v{32+16*m+i}, 0")
    e("s_mov_b32 s36, 0")
    e(f"s_mov_b32 s37, {niter}")
    lab(f"L_gemv_{uid}")
    for m in range(nm):
        e(f"buffer_load_dword v{10+m}, v3, s[{wsrds[m]}:{wsrds[m]+3}], s36 offen")
    e("ds_read_b128 v[16:19], v4")
    e("ds_read_b128 v[20:23], v4 offset:16")
    e("v_add_u32 v4, 2048, v4")
    e("s_waitcnt vmcnt(0) lgkmcnt(0)")
    for m in range(nm):
        e(f"v_lshlrev_b32 v12, 16, v{10+m}")
        e(f"v_and_b32 v13, 0xffff0000, v{10+m}")
        for b in range(8):
            e(f"v_fmac_f32 v{32+16*m+2*b}, v{16+b}, v12")
            e(f"v_fmac_f32 v{32+16*m+2*b+1}, v{16+b}, v13")
    e(f"s_add_u32 s36, s36, {row_bytes*64}")
    e("s_sub_u32 s37, s37, 1")
    e("s_cmp_lg_u32 s37, 0")
    e(f"s_cbranch_scc1 L_gemv_{uid}")
    e("v_lshlrev_b32 v5, 3, v1")
    e(f"v_add_u32 v5, {ACC}, v5")
    for m in range(nm):
        for b in range(8):
            e(f"ds_add_f32 v5, v{32+16*m+2*b} offset:{m*1024+b*128}")
            e(f"ds_add_f32 v5, v{32+16*m+2*b+1} offset:{m*1024+b*128+4}")
    e("s_waitcnt lgkmcnt(0)")
    e("s_barrier")

def zero_acc(ACC):
    e("v_lshlrev_b32 v1, 2, v0")
    e("v_and_b32 v1, 2047, v1")
    e(f"v_add_u32 v1, {ACC}, v1")
    e("v_mov_b32 v2, 0")
    e("ds_write_b32 v1, v2")

def ln_mod_prologue(xsrc, xsrd, xoff, wssrd, shift_idx, scale_idx, uid):
    e("v_lshrrev_b32 v1, 6, v0")
    e("s_nop 0")
    e("v_readfirstlane_b32 s38, v1")
    e("s_nop 3")
    e("s_cmp_ge_u32 s38, 8")
    e(f"s_cbranch_scc1 L_lnskip_{uid}")
    e("v_and_b32 v2, 63, v0")
    if xsrc == 'bf16':
        e("s_mul_i32 s39, s38, 896")
        e("v_lshlrev_b32 v3, 1, v2")
        for i in range(7):
            e(f"buffer_load_ushort v{16+i}, v3, s[{xsrd}:{xsrd+3}], s39 offen offset:{128*i}")
    else:
        e("s_mul_i32 s39, s38, 1792")
        e(f"s_add_u32 s39, s39, {xoff}")
        e("v_lshlrev_b32 v3, 2, v2")
        for i in range(7):
            e(f"buffer_load_dword v{16+i}, v3, s[{xsrd}:{xsrd+3}], s39 offen offset:{256*i}")
    e(f"s_mul_i32 s40, s38, {2688*4}")
    e(f"s_add_u32 s41, s40, {WS_MOD + shift_idx*448*4}")
    e(f"s_add_u32 s42, s40, {WS_MOD + scale_idx*448*4}")
    e("v_lshlrev_b32 v3, 2, v2")
    for i in range(7):
        e(f"buffer_load_dword v{24+i}, v3, s[{wssrd}:{wssrd+3}], s41 offen offset:{256*i}")
        e(f"buffer_load_dword v{32+i}, v3, s[{wssrd}:{wssrd+3}], s42 offen offset:{256*i}")
    e("s_waitcnt vmcnt(0)")
    if xsrc == 'bf16':
        for i in range(7):
            e(f"v_lshlrev_b32 v{16+i}, 16, v{16+i}")
    e("v_mov_b32 v4, v16")
    for i in range(1, 7):
        e(f"v_add_f32 v4, v4, v{16+i}")
    wave_sum(4, 5)
    e("v_mul_f32 v4, 0x3b124925, v4")
    e("v_mov_b32 v5, 0")
    for i in range(7):
        e(f"v_sub_f32 v6, v{16+i}, v4")
        e("v_fmac_f32 v5, v6, v6")
    wave_sum(5, 6)
    e("v_mul_f32 v5, 0x3b124925, v5")
    rbf(5)
    e("v_add_f32 v5, 0x3727c5ac, v5")
    rbf(5)
    e("v_sqrt_f32 v5, v5")
    e("s_nop 0")
    rbf(5)
    e("v_rcp_f32 v5, v5")
    rbf(4)
    e("v_lshlrev_b32 v7, 5, v2")
    e("s_lshl_b32 s39, s38, 2")
    e("v_add_u32 v7, s39, v7")
    for i in range(7):
        e(f"v_sub_f32 v6, v{16+i}, v4")
        rbf(6)
        e("v_mul_f32 v6, v6, v5")
        rbf(6)
        e(f"v_add_f32 v8, 1.0, v{32+i}")
        rbf(8)
        e("v_mul_f32 v6, v6, v8")
        rbf(6)
        e(f"v_add_f32 v6, v6, v{24+i}")
        rbf(6)
        e(f"ds_write_b32 v7, v6 offset:{2048*i}")
    lab(f"L_lnskip_{uid}")

def load_act_f32(wssrd, off, K):
    n = 8 * K // 1024
    e("v_lshrrev_b32 v1, 7, v0")
    e("v_and_b32 v2, 127, v0")
    e(f"s_mov_b32 s34, {K*4}")
    e("v_mul_lo_u32 v3, v1, s34")
    e("v_lshl_add_u32 v3, v2, 2, v3")
    e("v_lshlrev_b32 v4, 5, v2")
    e("v_lshl_add_u32 v4, v1, 2, v4")
    e(f"s_mov_b32 s35, {off}")
    for i in range(K // 128):
        e(f"buffer_load_dword v{16+i}, v3, s[{wssrd}:{wssrd+3}], s35 offen")
        e("s_add_u32 s35, s35, 512")
    e("s_waitcnt vmcnt(0)")
    for i in range(K // 128):
        if i*4096 < 65536:
            e(f"ds_write_b32 v4, v{16+i} offset:{4096*i}")
        else:
            if i*4096 == 65536:
                e("v_add_u32 v4, 0x10000, v4")
            e(f"ds_write_b32 v4, v{16+i} offset:{4096*i-65536}")

def epi_start(uid, ACC):
    e("v_cmp_gt_u32 vcc, 256, v0")
    e("s_and_saveexec_b64 s[44:45], vcc")
    e(f"s_cbranch_execz L_epi_{uid}")
    e("v_lshlrev_b32 v3, 2, v0")
    e(f"v_add_u32 v3, {ACC}, v3")
    e("ds_read_b32 v6, v3")
    e("ds_read_b32 v7, v3 offset:1024")
    e("v_lshrrev_b32 v1, 5, v0")
    e("v_and_b32 v2, 31, v0")
    e("s_lshl_b32 s35, s2, 5")
    e("v_add_u32 v2, s35, v2")
    e("s_waitcnt lgkmcnt(0)")
    rbf(6)
    rbf(7)

n = "k1_kernel"; kstart(n, 84)
srd('c', 4); srd('wmod', 8); srd('ws', 12)
ACC = 448*32
zero_acc(ACC)
e("s_waitcnt lgkmcnt(0)")
for i in range(4):
    e(f"v_add_u32 v{16+i}, {1024*i}, v0")
    e(f"v_lshlrev_b32 v3, 1, v{16+i}")
    e(f"buffer_load_ushort v{20+i}, v3, s[4:7], 0 offen")
e("s_waitcnt vmcnt(0)")
e("s_mov_b32 s34, 9586981")
for i in range(4):
    e(f"v_lshlrev_b32 v{20+i}, 16, v{20+i}")
    silu_rbf(20+i, 3)
    e(f"v_mul_hi_u32 v4, v{16+i}, s34")
    e("v_mul_u32_u24 v5, 448, v4")
    e(f"v_sub_u32 v5, v{16+i}, v5")
    e("v_lshlrev_b32 v5, 5, v5")
    e("v_lshl_add_u32 v5, v4, 2, v5")
    e(f"v_cmp_gt_u32 vcc, 3584, v{16+i}")
    e("s_and_saveexec_b64 s[44:45], vcc")
    e(f"ds_write_b32 v5, v{20+i}")
    e("s_mov_b64 exec, s[44:45]")
e("s_waitcnt lgkmcnt(0)")
e("s_barrier")
gemv_body(448, [8], 5376, ACC, "k1")
epi_start("k1", ACC)
e(f"v_mul_u32_u24 v3, {2688*4}, v1")
e("v_lshl_add_u32 v3, v2, 2, v3")
e(f"buffer_store_dword v6, v3, s[12:15], 0 offen offset:{WS_MOD}")
lab("L_epi_k1")
kend(n, 84, 1024, ACC+2048)

n = "k2_kernel"; kstart(n, 128)
srd('x', 4); srd('wq', 8); srd('ws', 12)
zero_acc(ACC)
e("s_waitcnt lgkmcnt(0)")
ln_mod_prologue('bf16', 4, 0, 12, 0, 1, "k2")
e("s_waitcnt lgkmcnt(0)")
e("s_barrier")
gemv_body(448, [8], 8192, ACC, "k2")
epi_start("k2", ACC)
e(f"v_lshlrev_b32 v3, 14, v1")
e("v_lshl_add_u32 v3, v2, 2, v3")
e(f"s_mov_b32 s35, {WS_Q}")
e(f"buffer_store_dword v6, v3, s[12:15], s35 offen")
lab("L_epi_k2")
kend(n, 128, 1024, ACC+2048)

n = "k3a_kernel"; kstart(n, 256)
srd('k', 4); srd('ws', 12)
e("s_lshr_b32 s16, s2, 2")
e("s_and_b32 s17, s2, 3")
e("v_lshrrev_b32 v1, 6, v0")
e("s_nop 0")
e("v_readfirstlane_b32 s18, v1")
e("v_and_b32 v2, 63, v0")
e("v_and_b32 v3, 31, v0")
e("s_lshl_b32 s19, s16, 11")
e(f"s_add_u32 s19, s19, {WS_Q}")
e("v_lshlrev_b32 v4, 5, v3")
e("s_waitcnt lgkmcnt(0)")
e("buffer_load_dwordx4 v[16:19], v4, s[12:15], s19 offen")
e("buffer_load_dwordx4 v[20:23], v4, s[12:15], s19 offen offset:16")
e("buffer_load_dwordx4 v[24:27], v4, s[12:15], s19 offen offset:1024")
e("buffer_load_dwordx4 v[28:31], v4, s[12:15], s19 offen offset:1040")
e("s_lshl_b32 s20, s16, 21")
e("s_lshl_b32 s21, s17, 17")
e("s_add_u32 s20, s20, s21")
e("s_lshl_b32 s21, s18, 14")
e("s_add_u32 s20, s20, s21")
e(f"s_add_u32 s20, s20, {3072*512}")
e("v_lshlrev_b32 v5, 4, v2")
for i in range(16):
    e(f"buffer_load_dwordx4 v[{64+4*i}:{64+4*i+3}], v5, s[4:7], s20 offen")
    e("s_add_u32 s20, s20, 1024")
e("s_waitcnt vmcnt(16)")
for h in range(2):
    for j in range(4):
        e(f"v_cvt_pk_bf16_f32 v{8+4*h+j}, v{16+8*h+2*j}, v{16+8*h+2*j+1}")
e("s_lshl_b32 s22, s16, 13")
e("s_lshl_b32 s21, s17, 10")
e("s_add_u32 s22, s22, s21")
e("s_lshl_b32 s21, s18, 7")
e("s_add_u32 s22, s22, s21")
e(f"s_add_u32 s22, s22, {WS_S}")
e("s_add_u32 s23, s22, 4096")
e("v_lshrrev_b32 v6, 5, v2")
e("v_lshlrev_b32 v6, 2, v6")
e("v_cmp_eq_u32 s[24:25], 31, v3")
e("s_waitcnt vmcnt(0)")
for i in range(16):
    for h in range(2):
        a = 32 + h
        e(f"v_mov_b32 v{a}, 0")
        for j in range(4):
            e(f"v_dot2_f32_bf16 v{a}, v{64+4*i+j}, v{8+4*h+j}, v{a}")
    e("s_nop 3")
    for sh in (1, 2, 4, 8):
        for h in range(2):
            a = 32 + h
            e(f"v_add_f32_dpp v{a}, v{a}, v{a} row_shr:{sh} row_mask:0xf bank_mask:0xf bound_ctrl:0")
        e("s_nop 1")
    for h in range(2):
        a = 32 + h
        e(f"v_add_f32_dpp v{a}, v{a}, v{a} row_bcast:15 row_mask:0xa bank_mask:0xf")
    for h in range(2):
        a = 32 + h
        rbf(a)
        e(f"v_mul_f32 v{a}, 0x3d800000, v{a}")
    e("s_mov_b64 exec, s[24:25]")
    e(f"buffer_store_dword v32, v6, s[12:15], s22 offen offset:{8*i}")
    e(f"buffer_store_dword v33, v6, s[12:15], s23 offen offset:{8*i}")
    e("s_mov_b64 exec, -1")
    e("s_nop 1")
kend(n, 256, 512, 0, 128)

n = "k3b_kernel"; kstart(n, 256)
srd('v', 4); srd('ws', 12)
e("s_lshr_b32 s16, s2, 2")
e("s_and_b32 s17, s2, 3")
e("v_lshrrev_b32 v1, 6, v0")
e("s_nop 0")
e("v_readfirstlane_b32 s18, v1")
e("v_and_b32 v2, 63, v0")
e("v_and_b32 v3, 127, v0")
e("v_lshlrev_b32 v3, 2, v3")
e("v_mov_b32 v4, 0")
e("ds_write_b32 v3, v4 offset:8192")
e("s_lshl_b32 s20, s16, 21")
e("s_lshl_b32 s21, s18, 16")
e("s_add_u32 s20, s20, s21")
e("s_lshl_b32 s21, s17, 7")
e("s_add_u32 s20, s20, s21")
e(f"s_add_u32 s20, s20, {3072*512}")
e("v_lshrrev_b32 v5, 3, v2")
e("v_lshlrev_b32 v5, 9, v5")
e("v_and_b32 v6, 7, v2")
e("v_lshl_add_u32 v5, v6, 4, v5")
e("s_waitcnt lgkmcnt(0)")
e("s_lshl_b32 s22, s16, 13")
e(f"s_add_u32 s22, s22, {WS_S}")
e("v_lshlrev_b32 v7, 4, v2")
for h in range(2):
    for j in range(4):
        e(f"buffer_load_dwordx4 v[{16+16*h+4*j}:{16+16*h+4*j+3}], v7, s[12:15], s22 offen offset:{1024*j}")
    e("s_add_u32 s22, s22, 4096")
for i in range(16):
    e(f"buffer_load_dwordx4 v[{64+4*i}:{64+4*i+3}], v5, s[4:7], s20 offen")
    e("s_add_u32 s20, s20, 4096")
e("s_waitcnt vmcnt(16)")
for h in range(2):
    b0 = 16 + 16*h
    e(f"v_mov_b32 v8, v{b0}")
    for j in range(1, 16):
        e(f"v_max_f32 v8, v8, v{b0+j}")
    wave_max(8)
    e("v_mov_b32 v9, 0")
    for j in range(16):
        e(f"v_sub_f32 v{b0+j}, v{b0+j}, v8")
        e(f"v_mul_f32 v{b0+j}, 0x3fb8aa3b, v{b0+j}")
        e(f"v_exp_f32 v{b0+j}, v{b0+j}")
        e("s_nop 0")
        e(f"v_add_f32 v9, v9, v{b0+j}")
    wave_sum(9, 10)
    e("v_rcp_f32 v9, v9")
    e("s_nop 0")
    for j in range(16):
        e(f"v_mul_f32 v{b0+j}, v{b0+j}, v9")
        rbf(b0+j)
e("s_cmp_lg_u32 s18, 0")
e("s_cbranch_scc1 L_k3b_skipw")
for h in range(2):
    for j in range(4):
        e(f"ds_write_b128 v7, v[{16+16*h+4*j}:{16+16*h+4*j+3}] offset:{4096*h+1024*j}")
lab("L_k3b_skipw")
e("s_waitcnt lgkmcnt(0)")
e("s_barrier")
e("v_lshrrev_b32 v8, 3, v2")
e("v_lshlrev_b32 v8, 2, v8")
e("s_lshl_b32 s21, s18, 9")
e("v_add_u32 v8, s21, v8")
for i in range(16):
    e(f"ds_read_b32 v{16+i}, v8 offset:{32*i}")
    e(f"ds_read_b32 v{32+i}, v8 offset:{4096+32*i}")
for i in range(16):
    e(f"v_mov_b32 v{48+i}, 0")
e("s_waitcnt vmcnt(0) lgkmcnt(0)")
for i in range(16):
    for j in range(4):
        e(f"v_lshlrev_b32 v10, 16, v{64+4*i+j}")
        e(f"v_and_b32 v11, 0xffff0000, v{64+4*i+j}")
        e(f"v_fmac_f32 v{48+2*j}, v{16+i}, v10")
        e(f"v_fmac_f32 v{48+2*j+1}, v{16+i}, v11")
        e(f"v_fmac_f32 v{56+2*j}, v{32+i}, v10")
        e(f"v_fmac_f32 v{56+2*j+1}, v{32+i}, v11")
e("v_lshlrev_b32 v9, 5, v6")
for h in range(2):
    for d in range(8):
        e(f"ds_add_f32 v9, v{48+8*h+d} offset:{8192+256*h+4*d}")
e("s_waitcnt lgkmcnt(0)")
e("s_barrier")
e("v_cmp_gt_u32 vcc, 128, v0")
e("s_and_saveexec_b64 s[44:45], vcc")
e("s_cbranch_execz k3b_kernel_end")
e("ds_read_b32 v4, v3 offset:8192")
e("v_lshrrev_b32 v5, 6, v0")
e("v_lshlrev_b32 v5, 10, v5")
e("v_lshl_add_u32 v5, v2, 2, v5")
e("s_lshl_b32 s22, s16, 11")
e("s_lshl_b32 s21, s17, 8")
e("s_add_u32 s22, s22, s21")
e(f"s_add_u32 s22, s22, {WS_O}")
e("s_waitcnt lgkmcnt(0)")
rbf(4)
e("buffer_store_dword v4, v5, s[12:15], s22 offen")
kend(n, 256, 512, 8192+512, 128)

n = "k4_kernel"; kstart(n, 14)
srd('x', 4); srd('wo', 8); srd('ws', 12)
ACC4 = 4096*32
zero_acc(ACC4)
e("s_waitcnt lgkmcnt(0)")
load_act_f32(12, WS_O, 4096)
e("s_waitcnt lgkmcnt(0)")
e("s_barrier")
gemv_body(4096, [8], 896, ACC4, "k4")
epi_start("k4", ACC4)
e("v_mul_u32_u24 v3, 448, v1")
e("v_add_u32 v3, v3, v2")
e("v_lshlrev_b32 v4, 1, v3")
e("buffer_load_ushort v8, v4, s[4:7], 0 offen")
e(f"v_mul_u32_u24 v5, {2688*4}, v1")
e("v_lshl_add_u32 v5, v2, 2, v5")
e(f"buffer_load_dword v9, v5, s[12:15], 0 offen offset:{WS_MOD+2*448*4}")
e("s_waitcnt vmcnt(0)")
e("v_lshlrev_b32 v8, 16, v8")
e("v_mul_f32 v6, v6, v9")
rbf(6)
e("v_add_f32 v6, v6, v8")
rbf(6)
e("v_lshlrev_b32 v4, 2, v3")
e(f"s_mov_b32 s35, {WS_X1}")
e("buffer_store_dword v6, v4, s[12:15], s35 offen")
lab("L_epi_k4")
kend(n, 14, 1024, ACC4+2048)

n = "k5_kernel"; kstart(n, 56)
srd('w1', 4); srd('w3', 8); srd('ws', 12)
zero_acc(ACC)
e("s_waitcnt lgkmcnt(0)")
ln_mod_prologue('f32', 12, WS_X1, 12, 3, 4, "k5")
e("s_waitcnt lgkmcnt(0)")
e("s_barrier")
gemv_body(448, [4, 8], 3584, ACC, "k5")
epi_start("k5", ACC)
silu_rbf(6, 8)
e("v_mul_f32 v6, v6, v7")
rbf(6)
e(f"v_mul_u32_u24 v3, {1792*4}, v1")
e("v_lshl_add_u32 v3, v2, 2, v3")
e(f"s_mov_b32 s35, {WS_H3}")
e("buffer_store_dword v6, v3, s[12:15], s35 offen")
lab("L_epi_k5")
kend(n, 56, 1024, ACC+2048)

n = "k6_kernel"; kstart(n, 14)
srd('out', 4); srd('w2', 8); srd('ws', 12)
ACC6 = 1792*32
zero_acc(ACC6)
e("s_waitcnt lgkmcnt(0)")
load_act_f32(12, WS_H3, 1792)
e("s_waitcnt lgkmcnt(0)")
e("s_barrier")
gemv_body(1792, [8], 896, ACC6, "k6")
epi_start("k6", ACC6)
e("v_mul_u32_u24 v3, 448, v1")
e("v_add_u32 v3, v3, v2")
e("v_lshlrev_b32 v4, 2, v3")
e(f"s_mov_b32 s35, {WS_X1}")
e("buffer_load_dword v8, v4, s[12:15], s35 offen")
e(f"v_mul_u32_u24 v5, {2688*4}, v1")
e("v_lshl_add_u32 v5, v2, 2, v5")
e(f"s_mov_b32 s36, {WS_MOD+5*448*4}")
e(f"buffer_load_dword v9, v5, s[12:15], s36 offen")
e("s_waitcnt vmcnt(0)")
e("v_mul_f32 v6, v6, v9")
rbf(6)
e("v_add_f32 v6, v6, v8")
e("v_cvt_pk_bf16_f32 v6, v6, v6")
e("v_lshlrev_b32 v4, 1, v3")
e("buffer_store_short v6, v4, s[4:7], 0 offen")
lab("L_epi_k6")
kend(n, 14, 1024, ACC6+2048)

out = [HDR.rstrip()]
for (name, grid, block, lds, vg) in kernels:
    out.append(f"; @launch kernel={name} grid=({grid},1,1) block=({block},1,1) lds={lds}")
out.append('.amdgcn_target "amdgcn-amd-amdhsa--gfx950"')
out.append(".text")
out += L
out.append('.section .rodata,"a"')
for (name, grid, block, lds, vg) in kernels:
    out.append(".p2align 6")
    out.append(f".amdhsa_kernel {name}")
    out.append(f"  .amdhsa_next_free_vgpr {vg}")
    out.append("  .amdhsa_next_free_sgpr 64")
    out.append(f"  .amdhsa_accum_offset {vg}")
    out.append("  .amdhsa_group_segment_fixed_size 0")
    out.append("  .amdhsa_kernarg_size 112")
    out.append("  .amdhsa_user_sgpr_count 2")
    out.append("  .amdhsa_user_sgpr_kernarg_segment_ptr 1")
    out.append("  .amdhsa_system_sgpr_workgroup_id_x 1")
    out.append("  .amdhsa_float_denorm_mode_32 3")
    out.append(".end_amdhsa_kernel")
open(sys.argv[1], "w").write("\n".join(out) + "\n")
```

```python
import sys
NAME = "adaLN_cond__sliding_block_cached__glu_gated_swiglu__decode"
HDR = open("cdna_kernels/%s.s.ref" % NAME).read().split("; Override launch geometry")[0]

L = []
def e(s): L.append("    " + s)
def lab(s): L.append(s + ":")

KA = dict(x=0, k=8, v=16, wq=24, wo=32, bx=40, w1=48, w3=56, w2=64, c=72, wmod=80, out=88, dbg=96, ws=104)
SZ = dict(x=8*448*2, k=8*8*4096*256*2, v=8*8*4096*256*2, wq=448*4096*2, wo=4096*448*2, w1=448*1792*2, w3=448*1792*2,
          w2=1792*448*2, c=8*448*2, wmod=448*2688*2, out=8*448*2, dbg=256, ws=536870912)
WS_MOD = 0
WS_Q = 0x20000
WS_S = 0x40000
WS_O = 0xC0000
WS_X1 = 0xE0000
WS_H3 = 0xF0000

def srd(name, s):
    e(f"s_load_dwordx2 s[{s}:{s+1}], s[0:1], {KA[name]}")
    e(f"s_mov_b32 s{s+2}, {SZ[name]}")
    e(f"s_mov_b32 s{s+3}, 0x00020000")

def rbf(v, t=None):
    e(f"v_cvt_pk_bf16_f32 v{v}, v{v}, v{v}")
    e(f"v_and_b32 v{v}, 0xffff0000, v{v}")

def wave_sum(v, t):
    e("s_nop 1")
    e(f"v_add_f32_dpp v{v}, v{v}, v{v} quad_perm:[1,0,3,2] row_mask:0xf bank_mask:0xf")
    e("s_nop 1")
    e(f"v_add_f32_dpp v{v}, v{v}, v{v} quad_perm:[2,3,0,1] row_mask:0xf bank_mask:0xf")
    e("s_nop 1")
    e(f"v_add_f32_dpp v{v}, v{v}, v{v} row_half_mirror row_mask:0xf bank_mask:0xf")
    e("s_nop 1")
    e(f"v_add_f32_dpp v{v}, v{v}, v{v} row_mirror row_mask:0xf bank_mask:0xf")
    e("s_nop 1")
    e(f"v_readlane_b32 s30, v{v}, 0")
    e(f"v_readlane_b32 s31, v{v}, 16")
    e(f"v_readlane_b32 s32, v{v}, 32")
    e(f"v_readlane_b32 s33, v{v}, 48")
    e("s_nop 3")
    e(f"v_mov_b32 v{v}, s30")
    e(f"v_add_f32 v{v}, s31, v{v}")
    e(f"v_add_f32 v{v}, s32, v{v}")
    e(f"v_add_f32 v{v}, s33, v{v}")

def wave_max(v):
    e("s_nop 1")
    e(f"v_max_f32_dpp v{v}, v{v}, v{v} quad_perm:[1,0,3,2] row_mask:0xf bank_mask:0xf")
    e("s_nop 1")
    e(f"v_max_f32_dpp v{v}, v{v}, v{v} quad_perm:[2,3,0,1] row_mask:0xf bank_mask:0xf")
    e("s_nop 1")
    e(f"v_max_f32_dpp v{v}, v{v}, v{v} row_half_mirror row_mask:0xf bank_mask:0xf")
    e("s_nop 1")
    e(f"v_max_f32_dpp v{v}, v{v}, v{v} row_mirror row_mask:0xf bank_mask:0xf")
    e("s_nop 1")
    e(f"v_readlane_b32 s30, v{v}, 0")
    e(f"v_readlane_b32 s31, v{v}, 16")
    e(f"v_readlane_b32 s32, v{v}, 32")
    e(f"v_readlane_b32 s33, v{v}, 48")
    e("s_nop 3")
    e(f"v_mov_b32 v{v}, s30")
    e(f"v_max_f32 v{v}, s31, v{v}")
    e(f"v_max_f32 v{v}, s32, v{v}")
    e(f"v_max_f32 v{v}, s33, v{v}")

def silu_rbf(v, t):
    e(f"v_mul_f32 v{t}, 0xbfb8aa3b, v{v}")
    e(f"v_exp_f32 v{t}, v{t}")
    e("s_nop 0")
    e(f"v_add_f32 v{t}, 1.0, v{t}")
    e(f"v_min_f32 v{t}, 0x7e000000, v{t}")
    e(f"v_rcp_f32 v60, v{t}")
    e("s_nop 0")
    e(f"v_mul_f32 v61, v{v}, v60")
    e(f"v_fma_f32 v62, -v61, v{t}, v{v}")
    e(f"v_fma_f32 v{v}, v62, v60, v61")
    rbf(v)

kernels = []
def kstart(name, nwg):
    L.append(".p2align 8")
    L.append(f".globl {name}")
    L.append(f".type {name},@function")
    lab(name)
    e(f"s_cmp_ge_u32 s2, {nwg}")
    e(f"s_cbranch_scc1 {name}_end")
def kend(name, grid, block, lds, vg=128):
    lab(name + "_end")
    e("s_endpgm")
    kernels.append((name, grid, block, lds, vg))

def gemv_body(K, wsrds, row_bytes, ACC, uid):
    nm = len(wsrds)
    niter = K // 64
    assert K % 64 == 0
    e("v_and_b32 v1, 15, v0")
    e("v_lshrrev_b32 v2, 4, v0")
    e(f"s_mov_b32 s34, {row_bytes}")
    e("v_mul_lo_u32 v3, v2, s34")
    e("s_lshl_b32 s35, s2, 6")
    e("v_lshl_add_u32 v3, v1, 2, v3")
    e("v_add_u32 v3, s35, v3")
    e("v_lshlrev_b32 v4, 5, v2")
    for m in range(nm):
        for i in range(16):
            e(f"v_mov_b32 v{32+16*m+i}, 0")
    e("s_mov_b32 s36, 0")
    e(f"s_mov_b32 s37, {niter}")
    lab(f"L_gemv_{uid}")
    for m in range(nm):
        e(f"buffer_load_dword v{10+m}, v3, s[{wsrds[m]}:{wsrds[m]+3}], s36 offen")
    e("ds_read_b128 v[16:19], v4")
    e("ds_read_b128 v[20:23], v4 offset:16")
    e("v_add_u32 v4, 2048, v4")
    e("s_waitcnt vmcnt(0) lgkmcnt(0)")
    for m in range(nm):
        e(f"v_lshlrev_b32 v12, 16, v{10+m}")
        e(f"v_and_b32 v13, 0xffff0000, v{10+m}")
        for b in range(8):
            e(f"v_fmac_f32 v{32+16*m+2*b}, v{16+b}, v12")
            e(f"v_fmac_f32 v{32+16*m+2*b+1}, v{16+b}, v13")
    e(f"s_add_u32 s36, s36, {row_bytes*64}")
    e("s_sub_u32 s37, s37, 1")
    e("s_cmp_lg_u32 s37, 0")
    e(f"s_cbranch_scc1 L_gemv_{uid}")
    e("v_lshlrev_b32 v5, 3, v1")
    e(f"v_add_u32 v5, {ACC}, v5")
    for m in range(nm):
        for b in range(8):
            e(f"ds_add_f32 v5, v{32+16*m+2*b} offset:{m*1024+b*128}")
            e(f"ds_add_f32 v5, v{32+16*m+2*b+1} offset:{m*1024+b*128+4}")
    e("s_waitcnt lgkmcnt(0)")
    e("s_barrier")

def zero_acc(ACC):
    e("v_lshlrev_b32 v1, 2, v0")
    e("v_and_b32 v1, 2047, v1")
    e(f"v_add_u32 v1, {ACC}, v1")
    e("v_mov_b32 v2, 0")
    e("ds_write_b32 v1, v2")

def ln_mod_prologue(xsrc, xsrd, xoff, wssrd, shift_idx, scale_idx, uid):
    e("v_lshrrev_b32 v1, 6, v0")
    e("s_nop 0")
    e("v_readfirstlane_b32 s38, v1")
    e("s_nop 3")
    e("s_cmp_ge_u32 s38, 8")
    e(f"s_cbranch_scc1 L_lnskip_{uid}")
    e("v_and_b32 v2, 63, v0")
    if xsrc == 'bf16':
        e("s_mul_i32 s39, s38, 896")
        e("v_lshlrev_b32 v3, 1, v2")
        for i in range(7):
            e(f"buffer_load_ushort v{16+i}, v3, s[{xsrd}:{xsrd+3}], s39 offen offset:{128*i}")
    else:
        e("s_mul_i32 s39, s38, 1792")
        e(f"s_add_u32 s39, s39, {xoff}")
        e("v_lshlrev_b32 v3, 2, v2")
        for i in range(7):
            e(f"buffer_load_dword v{16+i}, v3, s[{xsrd}:{xsrd+3}], s39 offen offset:{256*i}")
    e(f"s_mul_i32 s40, s38, {2688*4}")
    e(f"s_add_u32 s41, s40, {WS_MOD + shift_idx*448*4}")
    e(f"s_add_u32 s42, s40, {WS_MOD + scale_idx*448*4}")
    e("v_lshlrev_b32 v3, 2, v2")
    for i in range(7):
        e(f"buffer_load_dword v{24+i}, v3, s[{wssrd}:{wssrd+3}], s41 offen offset:{256*i}")
        e(f"buffer_load_dword v{32+i}, v3, s[{wssrd}:{wssrd+3}], s42 offen offset:{256*i}")
    e("s_waitcnt vmcnt(0)")
    if xsrc == 'bf16':
        for i in range(7):
            e(f"v_lshlrev_b32 v{16+i}, 16, v{16+i}")
    e("v_mov_b32 v4, v16")
    for i in range(1, 7):
        e(f"v_add_f32 v4, v4, v{16+i}")
    wave_sum(4, 5)
    e("v_mul_f32 v4, 0x3b124925, v4")
    e("v_mov_b32 v5, 0")
    for i in range(7):
        e(f"v_sub_f32 v6, v{16+i}, v4")
        e("v_fmac_f32 v5, v6, v6")
    wave_sum(5, 6)
    e("v_mul_f32 v5, 0x3b124925, v5")
    rbf(5)
    e("v_add_f32 v5, 0x3727c5ac, v5")
    rbf(5)
    e("v_sqrt_f32 v5, v5")
    e("s_nop 0")
    rbf(5)
    e("v_rcp_f32 v5, v5")
    rbf(4)
    e("v_lshlrev_b32 v7, 5, v2")
    e("s_lshl_b32 s39, s38, 2")
    e("v_add_u32 v7, s39, v7")
    for i in range(7):
        e(f"v_sub_f32 v6, v{16+i}, v4")
        rbf(6)
        e("v_mul_f32 v6, v6, v5")
        rbf(6)
        e(f"v_add_f32 v8, 1.0, v{32+i}")
        rbf(8)
        e("v_mul_f32 v6, v6, v8")
        rbf(6)
        e(f"v_add_f32 v6, v6, v{24+i}")
        rbf(6)
        e(f"ds_write_b32 v7, v6 offset:{2048*i}")
    lab(f"L_lnskip_{uid}")

def load_act_f32(wssrd, off, K):
    n = 8 * K // 1024
    e("v_lshrrev_b32 v1, 7, v0")
    e("v_and_b32 v2, 127, v0")
    e(f"s_mov_b32 s34, {K*4}")
    e("v_mul_lo_u32 v3, v1, s34")
    e("v_lshl_add_u32 v3, v2, 2, v3")
    e("v_lshlrev_b32 v4, 5, v2")
    e("v_lshl_add_u32 v4, v1, 2, v4")
    e(f"s_mov_b32 s35, {off}")
    for i in range(K // 128):
        e(f"buffer_load_dword v{16+i}, v3, s[{wssrd}:{wssrd+3}], s35 offen")
        e("s_add_u32 s35, s35, 512")
    e("s_waitcnt vmcnt(0)")
    for i in range(K // 128):
        if i*4096 < 65536:
            e(f"ds_write_b32 v4, v{16+i} offset:{4096*i}")
        else:
            if i*4096 == 65536:
                e("v_add_u32 v4, 0x10000, v4")
            e(f"ds_write_b32 v4, v{16+i} offset:{4096*i-65536}")

def epi_start(uid, ACC):
    e("v_cmp_gt_u32 vcc, 256, v0")
    e("s_and_saveexec_b64 s[44:45], vcc")
    e(f"s_cbranch_execz L_epi_{uid}")
    e("v_lshlrev_b32 v3, 2, v0")
    e(f"v_add_u32 v3, {ACC}, v3")
    e("ds_read_b32 v6, v3")
    e("ds_read_b32 v7, v3 offset:1024")
    e("v_lshrrev_b32 v1, 5, v0")
    e("v_and_b32 v2, 31, v0")
    e("s_lshl_b32 s35, s2, 5")
    e("v_add_u32 v2, s35, v2")
    e("s_waitcnt lgkmcnt(0)")
    rbf(6)
    rbf(7)

n = "k1_kernel"; kstart(n, 84)
srd('c', 4); srd('wmod', 8); srd('ws', 12)
ACC = 448*32
zero_acc(ACC)
e("s_waitcnt lgkmcnt(0)")
for i in range(4):
    e(f"v_add_u32 v{16+i}, {1024*i}, v0")
    e(f"v_lshlrev_b32 v3, 1, v{16+i}")
    e(f"buffer_load_ushort v{20+i}, v3, s[4:7], 0 offen")
e("s_waitcnt vmcnt(0)")
e("s_mov_b32 s34, 9586981")
for i in range(4):
    e(f"v_lshlrev_b32 v{20+i}, 16, v{20+i}")
    silu_rbf(20+i, 3)
    e(f"v_mul_hi_u32 v4, v{16+i}, s34")
    e("v_mul_u32_u24 v5, 448, v4")
    e(f"v_sub_u32 v5, v{16+i}, v5")
    e("v_lshlrev_b32 v5, 5, v5")
    e("v_lshl_add_u32 v5, v4, 2, v5")
    e(f"v_cmp_gt_u32 vcc, 3584, v{16+i}")
    e("s_and_saveexec_b64 s[44:45], vcc")
    e(f"ds_write_b32 v5, v{20+i}")
    e("s_mov_b64 exec, s[44:45]")
e("s_waitcnt lgkmcnt(0)")
e("s_barrier")
gemv_body(448, [8], 5376, ACC, "k1")
epi_start("k1", ACC)
e(f"v_mul_u32_u24 v3, {2688*4}, v1")
e("v_lshl_add_u32 v3, v2, 2, v3")
e(f"buffer_store_dword v6, v3, s[12:15], 0 offen offset:{WS_MOD}")
lab("L_epi_k1")
kend(n, 84, 1024, ACC+2048)

n = "k2_kernel"; kstart(n, 128)
srd('x', 4); srd('wq', 8); srd('ws', 12)
zero_acc(ACC)
e("s_waitcnt lgkmcnt(0)")
ln_mod_prologue('bf16', 4, 0, 12, 0, 1, "k2")
e("s_waitcnt lgkmcnt(0)")
e("s_barrier")
gemv_body(448, [8], 8192, ACC, "k2")
epi_start("k2", ACC)
e(f"v_lshlrev_b32 v3, 14, v1")
e("v_lshl_add_u32 v3, v2, 2, v3")
e(f"s_mov_b32 s35, {WS_Q}")
e(f"buffer_store_dword v6, v3, s[12:15], s35 offen")
lab("L_epi_k2")
kend(n, 128, 1024, ACC+2048)

n = "k3a_kernel"; kstart(n, 256)
srd('k', 4); srd('ws', 12)
e("s_lshr_b32 s16, s2, 2")
e("s_and_b32 s17, s2, 3")
e("v_lshrrev_b32 v1, 6, v0")
e("s_nop 0")
e("v_readfirstlane_b32 s18, v1")
e("v_and_b32 v2, 63, v0")
e("v_and_b32 v3, 31, v0")
e("s_lshl_b32 s19, s16, 11")
e(f"s_add_u32 s19, s19, {WS_Q}")
e("v_lshlrev_b32 v4, 5, v3")
e("s_waitcnt lgkmcnt(0)")
e("buffer_load_dwordx4 v[16:19], v4, s[12:15], s19 offen")
e("buffer_load_dwordx4 v[20:23], v4, s[12:15], s19 offen offset:16")
e("buffer_load_dwordx4 v[24:27], v4, s[12:15], s19 offen offset:1024")
e("buffer_load_dwordx4 v[28:31], v4, s[12:15], s19 offen offset:1040")
e("s_lshl_b32 s20, s16, 21")
e("s_lshl_b32 s21, s17, 17")
e("s_add_u32 s20, s20, s21")
e("s_lshl_b32 s21, s18, 14")
e("s_add_u32 s20, s20, s21")
e(f"s_add_u32 s20, s20, {3072*512}")
e("v_lshlrev_b32 v5, 4, v2")
for i in range(16):
    e(f"buffer_load_dwordx4 v[{64+4*i}:{64+4*i+3}], v5, s[4:7], s20 offen")
    e("s_add_u32 s20, s20, 1024")
e("s_waitcnt vmcnt(16)")
for h in range(2):
    for j in range(4):
        e(f"v_cvt_pk_bf16_f32 v{8+4*h+j}, v{16+8*h+2*j}, v{16+8*h+2*j+1}")
e("s_lshl_b32 s22, s16, 13")
e("s_lshl_b32 s21, s17, 10")
e("s_add_u32 s22, s22, s21")
e("s_lshl_b32 s21, s18, 7")
e("s_add_u32 s22, s22, s21")
e(f"s_add_u32 s22, s22, {WS_S}")
e("s_add_u32 s23, s22, 4096")
e("v_lshrrev_b32 v6, 5, v2")
e("v_lshlrev_b32 v6, 2, v6")
e("v_cmp_eq_u32 s[24:25], 31, v3")
e("s_waitcnt vmcnt(0)")
for i in range(16):
    for h in range(2):
        a = 32 + h
        e(f"v_mov_b32 v{a}, 0")
        for j in range(4):
            e(f"v_dot2_f32_bf16 v{a}, v{64+4*i+j}, v{8+4*h+j}, v{a}")
    e("s_nop 3")
    for sh in (1, 2, 4, 8):
        for h in range(2):
            a = 32 + h
            e(f"v_add_f32_dpp v{a}, v{a}, v{a} row_shr:{sh} row_mask:0xf bank_mask:0xf bound_ctrl:0")
        e("s_nop 1")
    for h in range(2):
        a = 32 + h
        e(f"v_add_f32_dpp v{a}, v{a}, v{a} row_bcast:15 row_mask:0xa bank_mask:0xf")
    for h in range(2):
        a = 32 + h
        rbf(a)
        e(f"v_mul_f32 v{a}, 0x3d800000, v{a}")
    e("s_mov_b64 exec, s[24:25]")
    e(f"buffer_store_dword v32, v6, s[12:15], s22 offen offset:{8*i}")
    e(f"buffer_store_dword v33, v6, s[12:15], s23 offen offset:{8*i}")
    e("s_mov_b64 exec, -1")
    e("s_nop 1")
kend(n, 256, 512, 0, 128)

n = "k3b_kernel"; kstart(n, 256)
srd('v', 4); srd('ws', 12)
e("s_lshr_b32 s16, s2, 2")
e("s_and_b32 s17, s2, 3")
e("v_lshrrev_b32 v1, 6, v0")
e("s_nop 0")
e("v_readfirstlane_b32 s18, v1")
e("v_and_b32 v2, 63, v0")
e("v_and_b32 v3, 127, v0")
e("v_lshlrev_b32 v3, 2, v3")
e("v_mov_b32 v4, 0")
e("ds_write_b32 v3, v4 offset:8192")
e("s_lshl_b32 s20, s16, 21")
e("s_lshl_b32 s21, s18, 16")
e("s_add_u32 s20, s20, s21")
e("s_lshl_b32 s21, s17, 7")
e("s_add_u32 s20, s20, s21")
e(f"s_add_u32 s20, s20, {3072*512}")
e("v_lshrrev_b32 v5, 3, v2")
e("v_lshlrev_b32 v5, 9, v5")
e("v_and_b32 v6, 7, v2")
e("v_lshl_add_u32 v5, v6, 4, v5")
e("s_waitcnt lgkmcnt(0)")
e("s_lshl_b32 s22, s16, 13")
e(f"s_add_u32 s22, s22, {WS_S}")
e("v_lshlrev_b32 v7, 4, v2")
for h in range(2):
    for j in range(4):
        e(f"buffer_load_dwordx4 v[{16+16*h+4*j}:{16+16*h+4*j+3}], v7, s[12:15], s22 offen offset:{1024*j}")
    e("s_add_u32 s22, s22, 4096")
for i in range(16):
    e(f"buffer_load_dwordx4 v[{64+4*i}:{64+4*i+3}], v5, s[4:7], s20 offen")
    e("s_add_u32 s20, s20, 4096")
e("s_waitcnt vmcnt(16)")
for h in range(2):
    b0 = 16 + 16*h
    e(f"v_mov_b32 v8, v{b0}")
    for j in range(1, 16):
        e(f"v_max_f32 v8, v8, v{b0+j}")
    wave_max(8)
    e("v_mov_b32 v9, 0")
    for j in range(16):
        e(f"v_sub_f32 v{b0+j}, v{b0+j}, v8")
        e(f"v_mul_f32 v{b0+j}, 0x3fb8aa3b, v{b0+j}")
        e(f"v_exp_f32 v{b0+j}, v{b0+j}")
        e("s_nop 0")
        e(f"v_add_f32 v9, v9, v{b0+j}")
    wave_sum(9, 10)
    e("v_rcp_f32 v9, v9")
    e("s_nop 0")
    for j in range(16):
        e(f"v_mul_f32 v{b0+j}, v{b0+j}, v9")
        rbf(b0+j)
e("s_cmp_lg_u32 s18, 0")
e("s_cbranch_scc1 L_k3b_skipw")
for h in range(2):
    for j in range(4):
        e(f"ds_write_b128 v7, v[{16+16*h+4*j}:{16+16*h+4*j+3}] offset:{4096*h+1024*j}")
lab("L_k3b_skipw")
e("s_waitcnt lgkmcnt(0)")
e("s_barrier")
e("v_lshrrev_b32 v8, 3, v2")
e("v_lshlrev_b32 v8, 2, v8")
e("s_lshl_b32 s21, s18, 9")
e("v_add_u32 v8, s21, v8")
for i in range(16):
    e(f"ds_read_b32 v{16+i}, v8 offset:{32*i}")
    e(f"ds_read_b32 v{32+i}, v8 offset:{4096+32*i}")
for i in range(16):
    e(f"v_mov_b32 v{48+i}, 0")
e("s_waitcnt vmcnt(0) lgkmcnt(0)")
for i in range(16):
    for j in range(4):
        e(f"v_lshlrev_b32 v10, 16, v{64+4*i+j}")
        e(f"v_and_b32 v11, 0xffff0000, v{64+4*i+j}")
        e(f"v_fmac_f32 v{48+2*j}, v{16+i}, v10")
        e(f"v_fmac_f32 v{48+2*j+1}, v{16+i}, v11")
        e(f"v_fmac_f32 v{56+2*j}, v{32+i}, v10")
        e(f"v_fmac_f32 v{56+2*j+1}, v{32+i}, v11")
e("v_lshlrev_b32 v9, 5, v6")
for h in range(2):
    for d in range(8):
        e(f"ds_add_f32 v9, v{48+8*h+d} offset:{8192+256*h+4*d}")
e("s_waitcnt lgkmcnt(0)")
e("s_barrier")
e("v_cmp_gt_u32 vcc, 128, v0")
e("s_and_saveexec_b64 s[44:45], vcc")
e("s_cbranch_execz k3b_kernel_end")
e("ds_read_b32 v4, v3 offset:8192")
e("v_lshrrev_b32 v5, 6, v0")
e("v_lshlrev_b32 v5, 10, v5")
e("v_lshl_add_u32 v5, v2, 2, v5")
e("s_lshl_b32 s22, s16, 11")
e("s_lshl_b32 s21, s17, 8")
e("s_add_u32 s22, s22, s21")
e(f"s_add_u32 s22, s22, {WS_O}")
e("s_waitcnt lgkmcnt(0)")
rbf(4)
e("buffer_store_dword v4, v5, s[12:15], s22 offen")
kend(n, 256, 512, 8192+512, 128)

n = "k4_kernel"; kstart(n, 14)
srd('x', 4); srd('wo', 8); srd('ws', 12)
ACC4 = 4096*32
zero_acc(ACC4)
e("s_waitcnt lgkmcnt(0)")
load_act_f32(12, WS_O, 4096)
e("s_waitcnt lgkmcnt(0)")
e("s_barrier")
gemv_body(4096, [8], 896, ACC4, "k4")
epi_start("k4", ACC4)
e("v_mul_u32_u24 v3, 448, v1")
e("v_add_u32 v3, v3, v2")
e("v_lshlrev_b32 v4, 1, v3")
e("buffer_load_ushort v8, v4, s[4:7], 0 offen")
e(f"v_mul_u32_u24 v5, {2688*4}, v1")
e("v_lshl_add_u32 v5, v2, 2, v5")
e(f"buffer_load_dword v9, v5, s[12:15], 0 offen offset:{WS_MOD+2*448*4}")
e("s_waitcnt vmcnt(0)")
e("v_lshlrev_b32 v8, 16, v8")
e("v_mul_f32 v6, v6, v9")
rbf(6)
e("v_add_f32 v6, v6, v8")
rbf(6)
e("v_lshlrev_b32 v4, 2, v3")
e(f"s_mov_b32 s35, {WS_X1}")
e("buffer_store_dword v6, v4, s[12:15], s35 offen")
lab("L_epi_k4")
kend(n, 14, 1024, ACC4+2048)

n = "k5_kernel"; kstart(n, 56)
srd('w1', 4); srd('w3', 8); srd('ws', 12)
zero_acc(ACC)
e("s_waitcnt lgkmcnt(0)")
ln_mod_prologue('f32', 12, WS_X1, 12, 3, 4, "k5")
e("s_waitcnt lgkmcnt(0)")
e("s_barrier")
gemv_body(448, [4, 8], 3584, ACC, "k5")
epi_start("k5", ACC)
silu_rbf(6, 8)
e("v_mul_f32 v6, v6, v7")
rbf(6)
e(f"v_mul_u32_u24 v3, {1792*4}, v1")
e("v_lshl_add_u32 v3, v2, 2, v3")
e(f"s_mov_b32 s35, {WS_H3}")
e("buffer_store_dword v6, v3, s[12:15], s35 offen")
lab("L_epi_k5")
kend(n, 56, 1024, ACC+2048)

n = "k6_kernel"; kstart(n, 14)
srd('out', 4); srd('w2', 8); srd('ws', 12)
ACC6 = 1792*32
zero_acc(ACC6)
e("s_waitcnt lgkmcnt(0)")
load_act_f32(12, WS_H3, 1792)
e("s_waitcnt lgkmcnt(0)")
e("s_barrier")
gemv_body(1792, [8], 896, ACC6, "k6")
epi_start("k6", ACC6)
e("v_mul_u32_u24 v3, 448, v1")
e("v_add_u32 v3, v3, v2")
e("v_lshlrev_b32 v4, 2, v3")
e(f"s_mov_b32 s35, {WS_X1}")
e("buffer_load_dword v8, v4, s[12:15], s35 offen")
e(f"v_mul_u32_u24 v5, {2688*4}, v1")
e("v_lshl_add_u32 v5, v2, 2, v5")
e(f"s_mov_b32 s36, {WS_MOD+5*448*4}")
e(f"buffer_load_dword v9, v5, s[12:15], s36 offen")
e("s_waitcnt vmcnt(0)")
e("v_mul_f32 v6, v6, v9")
rbf(6)
e("v_add_f32 v6, v6, v8")
e("v_cvt_pk_bf16_f32 v6, v6, v6")
e("v_lshlrev_b32 v4, 1, v3")
e("buffer_store_short v6, v4, s[4:7], 0 offen")
lab("L_epi_k6")
kend(n, 14, 1024, ACC6+2048)

NEXTRA = int(sys.argv[2]) if len(sys.argv) > 2 else 0
if NEXTRA:
    n = "empty_kernel"; kstart(n, 256); kend(n, 256, 256, 0, 32)
    ek = kernels.pop()
out = [HDR.rstrip()]
for (name, grid, block, lds, vg) in kernels:
    out.append(f"; @launch kernel={name} grid=({grid},1,1) block=({block},1,1) lds={lds}")
for i in range(NEXTRA):
    out.append("; @launch kernel=empty_kernel grid=(256,1,1) block=(256,1,1) lds=0")
if NEXTRA: kernels.append(ek)
out.append('.amdgcn_target "amdgcn-amd-amdhsa--gfx950"')
out.append(".text")
out += L
out.append('.section .rodata,"a"')
for (name, grid, block, lds, vg) in kernels:
    out.append(".p2align 6")
    out.append(f".amdhsa_kernel {name}")
    out.append(f"  .amdhsa_next_free_vgpr {vg}")
    out.append("  .amdhsa_next_free_sgpr 64")
    out.append(f"  .amdhsa_accum_offset {vg}")
    out.append("  .amdhsa_group_segment_fixed_size 0")
    out.append("  .amdhsa_kernarg_size 112")
    out.append("  .amdhsa_user_sgpr_count 2")
    out.append("  .amdhsa_user_sgpr_kernarg_segment_ptr 1")
    out.append("  .amdhsa_system_sgpr_workgroup_id_x 1")
    out.append("  .amdhsa_float_denorm_mode_32 3")
    out.append(".end_amdhsa_kernel")
open(sys.argv[1], "w").write("\n".join(out) + "\n")
```
